```python
import torch

def _softmax(x, axis=-1):
    return torch.softmax(x, dim=axis)
def _gelu(x):
    return torch.nn.functional.gelu(x, approximate="tanh")
def _silu(x):
    return torch.nn.functional.silu(x)
def _sigmoid(x):
    return torch.sigmoid(x)
def _layernorm(x, axis=-1, eps=1e-5):
    m = x.mean(dim=axis, keepdim=True)
    v = x.var(dim=axis, keepdim=True, unbiased=False)
    return (x - m) / torch.sqrt(v + eps)
def _scatter_add(tgt, idx, src, axis=0):
    return tgt.clone().index_add_(axis, idx, src)
def _segment_sum(src, seg, n):
    out = torch.zeros((n,) + src.shape[1:], dtype=src.dtype)
    return out.index_add_(0, seg, src)
def _pad(x, pw):
    flat = tuple(v for pair in reversed(pw) for v in pair)
    return torch.nn.functional.pad(x, flat)

kernel_name = 'sequential_preLN__mha_block__dense_activation_gelu__prompt'

def setup_inputs():

    _w = (lambda a: (lambda t: t.to(torch.bfloat16) if t.is_floating_point() else t)(torch.as_tensor(a)))
    def _A_setup():
        B, S, D, H = 1, 2048, 512, 32
        return {
            "x": _w((lambda *s: torch.randn(*s, dtype=torch.bfloat16) * 0.05)(B, S, D)),
            "wqkv": _w((lambda *s: torch.randn(*s, dtype=torch.bfloat16) * 0.05)(D, 3 * D)),
            "wo": _w((lambda *s: torch.randn(*s, dtype=torch.bfloat16) * 0.05)(D, D)),
        }
    _A_in = _A_setup()

    def _B_setup():
        B, S, D, F = 1, 2048, 512, 1792
        return {
            "x": _w((lambda *s: torch.randn(*s, dtype=torch.bfloat16) * 0.05)(B, S, D)),
            "w1": _w((lambda *s: torch.randn(*s, dtype=torch.bfloat16) * 0.8)(D, F) * (D ** -0.5)),
            "b1": _w((lambda *s: torch.randn(*s, dtype=torch.bfloat16) * 0.2)(F) * 0.01),
            "w2": _w((lambda *s: torch.randn(*s, dtype=torch.bfloat16) * 0.2)(F, D) * (F ** -0.5)),
            "b2": _w((lambda *s: torch.randn(*s, dtype=torch.bfloat16) * 0.2)(D) * 0.01),
        }
    _B_in = _B_setup()

    return {
        "A_x": _A_in["x"],
        "A_wqkv": _A_in["wqkv"],
        "A_wo": _A_in["wo"],
        "B_x": _B_in["x"],
        "B_w1": _B_in["w1"],
        "B_b1": _B_in["b1"],
        "B_w2": _B_in["w2"],
        "B_b2": _B_in["b2"],
    }

def reference(A_x, A_wqkv, A_wo, B_x, B_w1, B_b1, B_w2, B_b2):
    def _A_ref(x, wqkv, wo):
        B, S, D = x.shape
        H = 32
        Dh = D // H
        qkv = (lambda x, *d: x.permute(*d))((x @ wqkv).reshape(B, S, 3, H, Dh), 2, 0, 3, 1, 4)
        q, k, v = qkv[0], qkv[1], qkv[2]
        scores = torch.einsum("bhqd,bhkd->bhqk", q, k) * (Dh ** -0.5)
        p = _softmax(scores, axis=-1)
        o = torch.einsum("bhqk,bhkd->bhqd", p, v)
        return (lambda x, *d: x.permute(*d))(o, 0, 2, 1, 3).reshape(B, S, D) @ wo

    def _B_ref(x, w1, b1, w2, b2):
        h = torch.einsum("bsd,df->bsf", x, w1) + b1
        h = _gelu(h)
        return torch.einsum("bsf,fd->bsd", h, w2) + b2

    x = A_x
    h = x + _A_ref(_layernorm(x, axis=-1), A_wqkv, A_wo)
    h2 = h + _B_ref(_layernorm(h, axis=-1), B_w1, B_b1, B_w2, B_b2)
    return h2
```

```python
import sys, math

NAME = "sequential_preLN__mha_block__dense_activation_gelu__prompt"

KA_X, KA_WQKV, KA_WO, KA_BX, KA_W1, KA_B1, KA_W2, KA_B2, KA_OUT, KA_DBG, KA_WS = [8 * i for i in range(11)]
WS_Q = 0
WS_K = 2 << 20
WS_V = 4 << 20
WS_O = 6 << 20
WS_H = 8 << 20
WS_H1 = 10 << 20
WS_TOTAL = 18 << 20

QSCALE = 0.25 * math.log2(math.e)


def f32bits(x):
    import struct
    return struct.unpack("<I", struct.pack("<f", x))[0]


class Asm:
    def __init__(self):
        self.L = []

    def __call__(self, s):
        for line in s.strip("\n").split("\n"):
            self.L.append("    " + line.strip() if not line.strip().endswith(":") else line.strip())

    def label(self, s):
        self.L.append(s + ":")

    def text(self):
        return "\n".join(self.L) + "\n"


def srd(a, d, b, nbytes, add=0):
    if add:
        a(f"s_add_u32 s{d}, s{b}, {add}")
        a(f"s_addc_u32 s{d+1}, s{b+1}, 0")
    else:
        a(f"s_mov_b32 s{d}, s{b}")
        a(f"s_mov_b32 s{d+1}, s{b+1}")
    a(f"s_mov_b32 s{d+2}, {nbytes}")
    a(f"s_mov_b32 s{d+3}, 0x00020000")


def header(a, name):
    a.L.append(f".globl {name}")
    a.L.append(".p2align 8")
    a.L.append(f".type {name},@function")
    a.label(name)


def ln_loads(a, srd_s, soff_s, v_ldoff, xb):
    for j in range(16):
        st = j >> 3
        if j == 8:
            a(f"s_add_u32 s{soff_s}, s{soff_s}, 8192")
        a(f"buffer_load_dwordx4 v[{xb+4*j}:{xb+4*j+3}], v{v_ldoff}, s[{srd_s}:{srd_s+3}], s{soff_s} offen offset:{(j&7)*128}")


def ln_compute(a, xb, tmp, s_ones, v_wr0, v_wr1, act_off_ok=True):
    t = tmp
    for r in range(2):
        for q in range(4):
            a(f"v_mov_b32 v{t+4*r+q}, 0")
    for i in range(32):
        for r in range(2):
            x = xb + 32 * r + i
            a(f"v_dot2_f32_bf16 v{t+4*r+(i&1)}, v{x}, s{s_ones}, v{t+4*r+(i&1)}")
            a(f"v_dot2_f32_bf16 v{t+4*r+2+(i&1)}, v{x}, v{x}, v{t+4*r+2+(i&1)}")
    a("s_nop 2")
    a(f"v_add_f32 v{t+8}, v{t+0}, v{t+1}")
    a(f"v_add_f32 v{t+9}, v{t+2}, v{t+3}")
    a(f"v_add_f32 v{t+10}, v{t+4}, v{t+5}")
    a(f"v_add_f32 v{t+11}, v{t+6}, v{t+7}")
    for pat in ("quad_perm:[1,0,3,2]", "quad_perm:[2,3,0,1]", "row_half_mirror"):
        a("s_nop 1")
        for q in range(4):
            a(f"v_add_f32_dpp v{t+8+q}, v{t+8+q}, v{t+8+q} {pat} row_mask:0xf bank_mask:0xf")
    for r in range(2):
        s, q = t + 8 + 2 * r, t + 9 + 2 * r
        a(f"v_mul_f32 v{s}, {hex(f32bits(1.0/512))}, v{s}")
        a(f"v_mul_f32 v{q}, {hex(f32bits(1.0/512))}, v{q}")
        a(f"v_fma_f32 v{q}, -v{s}, v{s}, v{q}")
        a(f"v_max_f32 v{q}, 0, v{q}")
        a(f"v_add_f32 v{q}, {hex(f32bits(1e-5))}, v{q}")
        a(f"v_rsq_f32 v{q}, v{q}")
        a("s_nop 0")
        a(f"v_mov_b32 v{t+12+4*r}, v{q}")
        a(f"v_mov_b32 v{t+13+4*r}, v{q}")
        a(f"v_mul_f32 v{t+14+4*r}, v{s}, v{q}")
        a(f"v_sub_f32 v{t+14+4*r}, 0, v{t+14+4*r}")
        a(f"v_mov_b32 v{t+15+4*r}, v{t+14+4*r}")
    for r in range(2):
        for j in range(8):
            for e in range(4):
                x = xb + 32 * r + 4 * j + e
                p = t + 20 + 2 * (e & 1)
                a(f"v_lshlrev_b32 v{p}, 16, v{x}")
                a(f"v_and_b32 v{p+1}, 0xffff0000, v{x}")
                a(f"v_pk_fma_f32 v[{p}:{p+1}], v[{p}:{p+1}], v[{t+12+4*r}:{t+13+4*r}], v[{t+14+4*r}:{t+15+4*r}]")
                a(f"v_cvt_pk_bf16_f32 v{x}, v{p}, v{p+1}")
            base = (v_wr0, v_wr1)[r] + (j & 1)
            x = xb + 32 * r + 4 * j
            a(f"ds_write_b128 v{base}, v[{x}:{x+3}] offset:{(j>>1)*256}")


def ln_addr_setup(a, v_lane, s_w, act_base, v_wr0, v_wr1, t0, t1):
    a(f"v_lshrrev_b32 v{t0}, 3, v{v_lane}")
    a(f"v_and_b32 v{t1}, 7, v{v_lane}")
    for st, vb in ((0, v_wr0), (1, v_wr1)):
        for par in range(2):
            d = vb + par
            a(f"v_xor_b32 v{d}, v{t0}, v{t1}")
            if par ^ st:
                a(f"v_or_b32 v{d}, 8, v{d}")
            a(f"v_lshlrev_b32 v{d}, 4, v{d}")
            a(f"v_lshl_add_u32 v{d}, v{t0}, 10, v{d}")
            a(f"v_add_u32 v{d}, {act_base + st*8192}, v{d}")
            a(f"v_add_u32 v{d}, s{s_w}, v{d}")


def act_frag_addr_setup(a, v_lane, base_imm, s_rowoff, vA, t0, t1):
    a(f"v_and_b32 v{t0}, 31, v{v_lane}")
    a(f"v_lshrrev_b32 v{t1}, 5, v{v_lane}")
    for s in range(8):
        d = vA + s
        a(f"v_or_b32 v{d}, {2*s}, v{t1}")
        a(f"v_xor_b32 v{d}, v{d}, v{t0}")
        a(f"v_and_b32 v{d}, 15, v{d}")
        a(f"v_lshlrev_b32 v{d}, 4, v{d}")
        a(f"v_lshl_add_u32 v{d}, v{t0}, 10, v{d}")
        a(f"v_add_u32 v{d}, {base_imm}, v{d}")
        a(f"v_add_u32 v{d}, s{s_rowoff}, v{d}")


def k1():
    a = Asm()
    name = "qkv_kernel"
    header(a, name)
    WR = 0
    ACT = 98304
    a(f"""
    s_cmp_ge_u32 s2, 256
    s_cbranch_scc1 L_k1_end
    s_load_dwordx4 s[4:7], s[0:1], {KA_X}
    s_load_dwordx2 s[20:21], s[0:1], {KA_WS}
    v_and_b32 v1, 63, v0
    v_lshrrev_b32 v2, 6, v0
    s_and_b32 s24, s2, 7
    s_lshr_b32 s25, s2, 3
    v_readfirstlane_b32 s26, v2
    s_lshr_b32 s27, s24, 1
    s_lshl_b32 s27, s27, 3
    s_and_b32 s28, s25, 7
    s_add_u32 s27, s27, s28
    s_and_b32 s28, s24, 1
    s_lshl_b32 s28, s28, 2
    s_lshr_b32 s29, s25, 3
    s_add_u32 s28, s28, s29
    """)
    a(f"""
    v_lshrrev_b32 v3, 3, v1
    v_and_b32 v4, 7, v1
    v_lshlrev_b32 v5, 4, v4
    v_lshl_add_u32 v5, v3, 10, v5
    s_lshl_b32 s30, s27, 16
    s_lshl_b32 s31, s26, 14
    s_add_u32 s30, s30, s31
    s_waitcnt lgkmcnt(0)
    """)
    srd(a, 8, 4, 2097152)
    srd(a, 12, 6, 1572864)
    srd(a, 16, 20, WS_TOTAL)
    XB = 64
    ln_loads(a, 8, 30, 5, XB)
    a(f"""
    v_lshrrev_b32 v6, 4, v1
    v_and_b32 v6, 1, v6
    v_lshlrev_b32 v6, 2, v6
    v_xor_b32 v6, v6, v4
    v_lshlrev_b32 v6, 4, v6
    v_mul_u32_u24 v7, 3072, v3
    v_add_u32 v6, v6, v7
    s_mul_i32 s32, s26, {16*3072}
    s_lshl_b32 s33, s28, 7
    s_add_u32 s32, s32, s33
    s_lshl_b32 s33, s26, 11
    """)

    def dma_chunk(c):
        slot = c & 3
        for t in range(3):
            for jj in range(2):
                a(f"s_add_u32 m0, s33, {WR + slot*24576 + t*8192 + jj*1024}")
                a(f"s_add_u32 s34, s32, {(64*c + 8*jj)*3072 + t*1024}")
                a(f"buffer_load_dwordx4 v6, s[12:15], s34 offen lds")
    for c in range(4):
        dma_chunk(c)
    VWR0, VWR1 = 8, 10
    ln_addr_setup(a, 1, 31, ACT, VWR0, VWR1, 12, 13)
    VA = 16
    a("s_and_b32 s35, s26, 1")
    a("s_lshl_b32 s35, s35, 15")
    act_frag_addr_setup(a, 1, ACT, 35, VA, 12, 13)
    VW = 24
    a(f"""
    v_lshrrev_b32 v12, 5, v1
    v_lshlrev_b32 v12, 3, v12
    v_bfe_u32 v13, v1, 2, 2
    v_add_u32 v12, v12, v13
    v_lshlrev_b32 v12, 7, v12
    v_and_b32 v14, 1, v1
    v_lshlrev_b32 v14, 4, v14
    v_bfe_u32 v15, v1, 1, 1
    v_lshl_or_b32 v14, v15, 3, v14
    v_bfe_u32 v15, v1, 4, 1
    v_lshl_or_b32 v14, v15, 5, v14
    s_lshr_b32 s36, s26, 1
    s_lshl_b32 s37, s36, 6
    v_or_b32 v14, s37, v14
    v_lshrrev_b32 v13, 1, v13
    v_lshlrev_b32 v13, 6, v13
    v_xor_b32 v14, v14, v13
    v_add_u32 v{VW}, v12, v14
    v_add_u32 v{VW+1}, 49152, v{VW}
    s_mov_b32 s38, 0x3f803f80
    s_waitcnt vmcnt(24)
    """)
    ln_compute(a, XB, 32, 38, VWR0, VWR1)
    ACC = 128
    for i in range(48):
        a(f"v_mov_b32 v{ACC+i}, 0")
    FA = [64, 68]
    FW = [72, 84]

    def frag_loads(ks, buf):
        c = ks >> 2
        sp = ks & 3
        slot = c & 3
        a(f"ds_read_b128 v[{FA[buf]}:{FA[buf]+3}], v{VA+(ks&7)} offset:{(ks>>3)*256}")
        vb = VW + (slot >> 1)
        for t in range(3):
            for h2 in range(2):
                off = (slot & 1) * 24576 + t * 8192 + sp * 2048 + h2 * 512
                r = FW[buf] + 4 * t + 2 * h2
                a(f"ds_read_b64_tr_b16 v[{r}:{r+1}], v{vb} offset:{off}")

    def mfmas(buf):
        fa = f"v[{FA[buf]}:{FA[buf]+3}]"
        for t in range(3):
            fw = f"v[{FW[buf]+4*t}:{FW[buf]+4*t+3}]"
            acc = f"v[{ACC+16*t}:{ACC+16*t+15}]"
            if t < 2:
                a(f"v_mfma_f32_32x32x16_bf16 {acc}, {fw}, {fa}, {acc}")
            else:
                a(f"v_mfma_f32_32x32x16_bf16 {acc}, {fa}, {fw}, {acc}")

    issued = 3
    for c in range(8):
        n_out = 6 * (issued - c)
        a(f"s_waitcnt vmcnt({n_out}) lgkmcnt(0)")
        a("s_barrier")
        if c >= 1 and c + 3 <= 7:
            dma_chunk(c + 3)
            issued = c + 3
        frag_loads(4 * c, 0)
        for sp in range(4):
            ks = 4 * c + sp
            buf = sp & 1
            if sp < 3:
                frag_loads(ks + 1, buf ^ 1)
                a("s_waitcnt lgkmcnt(7)")
            else:
                a("s_waitcnt lgkmcnt(0)")
            mfmas(buf)
    a("s_nop 15")
    a(f"""
    s_lshl_b32 s40, s28, 2
    s_lshl_b32 s41, s36, 1
    s_add_u32 s40, s40, s41
    s_lshl_b32 s40, s40, 16
    s_lshl_b32 s41, s27, 1
    s_and_b32 s42, s26, 1
    s_add_u32 s41, s41, s42
    s_lshl_b32 s41, s41, 10
    s_add_u32 s40, s40, s41
    v_lshlrev_b32 v2, 4, v1
    s_mov_b32 s43, {hex(f32bits(QSCALE))}
    """)
    for i in range(16):
        a(f"v_mul_f32 v{ACC+i}, s43, v{ACC+i}")
    for t in range(2):
        for e in range(2):
            for i in range(4):
                r = ACC + 16 * t + 8 * e + 2 * i
                a(f"v_cvt_pk_bf16_f32 v{64+8*t+4*e+i}, v{r}, v{r+1}")
    for t in range(2):
        for e in range(2):
            a(f"s_add_u32 s44, s40, {(WS_Q if t == 0 else WS_K) + e*65536}")
            r = 64 + 8 * t + 4 * e
            a(f"buffer_store_dwordx4 v[{r}:{r+3}], v2, s[16:19], s44 offen")
    a(f"""
    v_and_b32 v3, 15, v1
    v_lshlrev_b32 v3, 4, v3
    v_lshrrev_b32 v4, 5, v1
    v_lshl_or_b32 v3, v4, 8, v3
    v_bfe_u32 v4, v1, 4, 1
    v_lshl_or_b32 v3, v4, 16, v3
    """)
    for e in range(2):
        for i in range(4):
            r = ACC + 32 + 8 * e + 2 * i
            a(f"v_cvt_pk_bf16_f32 v{80+4*e+i}, v{r}, v{r+1}")
    a(f"s_add_u32 s44, s40, {WS_V}")
    for e in range(2):
        a(f"buffer_store_dwordx4 v[{80+4*e}:{83+4*e}], v3, s[16:19], s44 offen offset:{512*e}")
    a.label("L_k1_end")
    a("s_endpgm")
    return name, a, dict(vgpr=176, sgpr=48, grid=256, block=256, lds=163840)


def k2():
    a = Asm()
    name = "attn_kernel"
    header(a, name)
    a(f"""
    s_cmp_ge_u32 s2, 256
    s_cbranch_scc1 L_k2_end
    s_load_dwordx2 s[20:21], s[0:1], {KA_WS}
    v_and_b32 v1, 63, v0
    v_lshrrev_b32 v2, 6, v0
    s_and_b32 s24, s2, 7
    s_lshr_b32 s25, s2, 3
    v_readfirstlane_b32 s26, v2
    s_lshl_b32 s27, s24, 2
    s_and_b32 s28, s25, 3
    s_add_u32 s27, s27, s28
    s_lshr_b32 s28, s25, 2
    v_lshlrev_b32 v2, 4, v1
    s_lshl_b32 s29, s27, 16
    s_lshl_b32 s30, s26, 10
    s_add_u32 s31, s29, s30
    s_lshl_b32 s32, s28, 13
    s_add_u32 s32, s32, s31
    s_waitcnt lgkmcnt(0)
    """)
    srd(a, 16, 20, WS_TOTAL)
    QF = 4
    a(f"buffer_load_dwordx4 v[{QF}:{QF+3}], v2, s[16:19], s32 offen")
    for c in range(8):
        a(f"s_add_u32 m0, s30, {c*8192}")
        a(f"s_add_u32 s33, s31, {WS_K + c*8192}")
        a(f"buffer_load_dwordx4 v2, s[16:19], s33 offen lds")
        a(f"s_add_u32 m0, s30, {65536 + c*8192}")
        a(f"s_add_u32 s33, s31, {WS_V + c*8192}")
        a(f"buffer_load_dwordx4 v2, s[16:19], s33 offen lds")
    KF = [8, 12]
    VF = [16, 24]
    PB = 32
    CI = 48
    S = [64, 80]
    O = 96
    a(f"""
    v_and_b32 v3, 15, v1
    v_lshlrev_b32 v3, 4, v3
    v_lshrrev_b32 v40, 5, v1
    v_lshl_or_b32 v3, v40, 8, v3
    v_add_u32 v3, 0x10000, v3
    s_mov_b32 s34, 0x0000ffff
    s_mov_b32 s35, 0x0000ffff
    """)
    a(f"""
    v_and_b32 v40, 27, v1
    v_mov_b32 v41, 0
    v_mov_b32 v42, 0x3f803f80
    v_cmp_eq_u32 vcc, 16, v40
    s_nop 1
    v_cndmask_b32 v41, v41, v42, vcc
    """)
    for r in range(16):
        a(f"v_mov_b32 v{VF[0]+r}, v41")
    for r in range(16):
        a(f"v_mov_b32 v{O+r}, 0")

    def kread(t, buf):
        a(f"ds_read_b128 v[{KF[buf]}:{KF[buf]+3}], v2 offset:{t*1024}")

    def vread(t, buf):
        a("s_mov_b64 exec, s[34:35]")
        a(f"ds_read_b128 v[{VF[buf]}:{VF[buf]+3}], v3 offset:{t*1024}")
        a(f"ds_read_b128 v[{VF[buf]+4}:{VF[buf]+7}], v3 offset:{t*1024+512}")
        a("s_mov_b64 exec, -1")

    qf = f"v[{QF}:{QF+3}]"
    a("s_waitcnt vmcnt(14)")
    a("s_barrier")
    kread(0, 0)
    kread(1, 1)
    vread(0, 0)
    a("s_waitcnt lgkmcnt(3)")
    a(f"v_mfma_f32_32x32x16_bf16 v[{S[1]}:{S[1]+15}], v[{KF[0]}:{KF[0]+3}], {qf}, 0")
    a("s_nop 15")
    s1 = S[1]
    a(f"v_max3_f32 v40, v{s1}, v{s1+1}, v{s1+2}")
    for i in range(3, 15, 2):
        a(f"v_max3_f32 v40, v{s1+i}, v{s1+i+1}, v40")
    a(f"v_max_f32 v40, v40, v{s1+15}")
    a("v_mov_b32 v41, v40")
    a("s_nop 1")
    a("v_permlane32_swap_b32 v40, v41")
    a("s_nop 1")
    a("v_max_f32 v40, v40, v41")
    a("v_sub_f32 v40, 0, v40")
    for r in range(16):
        a(f"v_mov_b32 v{CI+r}, v40")
    a("s_nop 1")
    ci = f"v[{CI}:{CI+15}]"
    a(f"v_mfma_f32_32x32x16_bf16 v[{S[0]}:{S[0]+15}], v[{KF[0]}:{KF[0]+3}], {qf}, {ci}")
    a("s_nop 7")
    oacc = f"v[{O}:{O+15}]"
    for t in range(64):
        b = t & 1
        sb = S[b]
        if t + 1 < 64:
            a("s_waitcnt lgkmcnt(0)")
            a(f"v_mfma_f32_32x32x16_bf16 v[{S[b^1]}:{S[b^1]+15}], v[{KF[b^1]}:{KF[b^1]+3}], {qf}, {ci}")
        else:
            a("s_waitcnt lgkmcnt(0)")
        if (t + 2) % 8 == 0 and t + 2 < 64:
            c = (t + 2) // 8
            a(f"s_waitcnt vmcnt({2*(7-c)})")
            a("s_barrier")
        if t + 2 < 64:
            kread(t + 2, b)
        if t + 1 < 64:
            vread(t + 1, b ^ 1)
        for hh in range(2):
            for i in range(8):
                a(f"v_exp_f32 v{sb+8*hh+i}, v{sb+8*hh+i}")
                if i % 2 == 1 and i > 1:
                    a(f"v_cvt_pk_bf16_f32 v{PB+4*hh+(i//2)-1}, v{sb+8*hh+i-3}, v{sb+8*hh+i-2}")
            a("s_nop 0")
            a(f"v_cvt_pk_bf16_f32 v{PB+4*hh+3}, v{sb+8*hh+6}, v{sb+8*hh+7}")
            a("s_nop 1")
            a(f"v_mfma_f32_32x32x16_bf16 {oacc}, v[{VF[b]+4*hh}:{VF[b]+4*hh+3}], v[{PB+4*hh}:{PB+4*hh+3}], {oacc}")
    a("s_nop 15")
    a(f"""
    v_max3_f32 v40, abs(v{O}), abs(v{O+1}), abs(v{O+2})
    v_max3_f32 v40, abs(v{O+3}), abs(v{O+4}), v40
    v_max3_f32 v40, abs(v{O+5}), abs(v{O+6}), v40
    v_max_f32 v40, abs(v{O+7}), v40
    v_mov_b32 v41, 0x71800000
    v_mov_b32 v42, 0x7f800000
    v_add_f32 v43, v{O}, v{O+1}
    v_add_f32 v43, v43, v{O+2}
    v_add_f32 v43, v43, v{O+3}
    v_add_f32 v43, v43, v{O+4}
    v_add_f32 v43, v43, v{O+5}
    v_add_f32 v43, v43, v{O+6}
    v_add_f32 v43, v43, v{O+7}
    v_cmp_nlt_f32 vcc, v{O+8}, v41
    v_cmp_nlt_f32 s[36:37], v40, v42
    v_cmp_u_f32 s[38:39], v43, v43
    s_nop 1
    s_or_b64 s[36:37], vcc, s[36:37]
    s_or_b64 s[36:37], s[36:37], s[38:39]
    s_cbranch_scc1 L_k2_slow
    """)
    a.label("L_k2_fin")
    a(f"""
    v_rcp_f32 v40, v{O+8}
    v_and_b32 v41, 31, v1
    v_lshlrev_b32 v41, 10, v41
    v_lshrrev_b32 v42, 5, v1
    v_lshl_or_b32 v41, v42, 4, v41
    s_lshl_b32 s36, s28, 18
    s_lshl_b32 s37, s26, 15
    s_add_u32 s36, s36, s37
    s_lshl_b32 s37, s27, 5
    s_add_u32 s36, s36, s37
    s_add_u32 s36, s36, {WS_O}
    """)
    for i in range(8):
        a(f"v_mul_f32 v{O+i}, v{O+i}, v40")
    for i in range(4):
        a(f"v_cvt_pk_bf16_f32 v{PB+i}, v{O+2*i}, v{O+2*i+1}")
    a(f"buffer_store_dwordx4 v[{PB}:{PB+3}], v41, s[16:19], s36 offen")
    a.label("L_k2_end")
    a("s_endpgm")
    a.label("L_k2_slow")
    for r in range(16):
        a(f"v_mov_b32 v{O+r}, 0")
    a(f"""
    v_mov_b32 v44, 0xff800000
    v_mov_b32 v45, v2
    v_mov_b32 v46, v3
    s_mov_b32 s40, 0
    """)
    a.label("L_k2_slow_loop")
    sb = S[0]
    a(f"""
    ds_read_b128 v[{KF[0]}:{KF[0]+3}], v45
    s_mov_b64 exec, s[34:35]
    ds_read_b128 v[{VF[0]}:{VF[0]+3}], v46
    ds_read_b128 v[{VF[0]+4}:{VF[0]+7}], v46 offset:512
    s_mov_b64 exec, -1
    s_waitcnt lgkmcnt(0)
    v_mfma_f32_32x32x16_bf16 v[{sb}:{sb+15}], v[{KF[0]}:{KF[0]+3}], {qf}, 0
    s_nop 15
    v_max3_f32 v40, v{sb}, v{sb+1}, v44
    """)
    for i in range(2, 16, 2):
        a(f"v_max3_f32 v40, v{sb+i}, v{sb+i+1}, v40")
    a(f"""
    v_mov_b32 v41, v40
    s_nop 1
    v_permlane32_swap_b32 v40, v41
    s_nop 1
    v_max_f32 v40, v40, v41
    v_sub_f32 v41, v44, v40
    v_exp_f32 v41, v41
    v_mov_b32 v44, v40
    """)
    for r in range(16):
        a(f"v_mul_f32 v{O+r}, v{O+r}, v41")
    for r in range(16):
        a(f"v_sub_f32 v{sb+r}, v{sb+r}, v40")
    for r in range(16):
        a(f"v_exp_f32 v{sb+r}, v{sb+r}")
    a("s_nop 0")
    for i in range(8):
        a(f"v_cvt_pk_bf16_f32 v{PB+i}, v{sb+2*i}, v{sb+2*i+1}")
    a("s_nop 1")
    a(f"v_mfma_f32_32x32x16_bf16 {oacc}, v[{VF[0]}:{VF[0]+3}], v[{PB}:{PB+3}], {oacc}")
    a(f"v_mfma_f32_32x32x16_bf16 {oacc}, v[{VF[0]+4}:{VF[0]+7}], v[{PB+4}:{PB+7}], {oacc}")
    a(f"""
    s_nop 15
    v_add_u32 v45, 1024, v45
    v_add_u32 v46, 1024, v46
    s_add_u32 s40, s40, 1
    s_cmp_lt_u32 s40, 64
    s_cbranch_scc1 L_k2_slow_loop
    s_branch L_k2_fin
    """)
    return name, a, dict(vgpr=112, sgpr=48, grid=256, block=512, lds=131072)


def gemm64(name, KT, act_from_ws, act_off, act_stride, w_ka, w_bytes, res_kind):
    a = Asm()
    header(a, name)
    nch = KT // 256
    npieces = 2 * nch
    NSUB = 5
    a(f"""
    s_cmp_ge_u32 s2, 256
    s_cbranch_scc1 L_{name}_end
    s_load_dwordx2 s[4:5], s[0:1], {w_ka}
    s_load_dwordx2 s[20:21], s[0:1], {KA_WS}
    s_load_dwordx2 s[6:7], s[0:1], {KA_X if res_kind == 'x' else KA_B2}
    s_load_dwordx2 s[22:23], s[0:1], {KA_OUT}
    v_and_b32 v1, 63, v0
    v_lshrrev_b32 v2, 6, v0
    s_and_b32 s24, s2, 7
    s_lshr_b32 s25, s2, 3
    v_readfirstlane_b32 s26, v2
    s_lshl_b32 s27, s24, 2
    s_and_b32 s28, s25, 3
    s_add_u32 s27, s27, s28
    s_lshr_b32 s28, s25, 2
    """)
    a(f"""
    v_lshrrev_b32 v3, 3, v1
    v_and_b32 v4, 7, v1
    v_lshrrev_b32 v5, 4, v1
    v_xor_b32 v6, v4, v5
    v_xor_b32 v7, 4, v6
    v_lshlrev_b32 v6, 4, v6
    v_lshlrev_b32 v7, 4, v7
    s_mov_b32 s29, {act_stride}
    v_mul_lo_u32 v8, v3, s29
    v_add_u32 v6, v6, v8
    v_add_u32 v7, v7, v8
    v_and_b32 v5, 1, v5
    v_lshlrev_b32 v5, 2, v5
    v_xor_b32 v5, v5, v4
    v_lshlrev_b32 v5, 4, v5
    v_lshl_add_u32 v5, v3, 10, v5
    s_mul_i32 s30, s27, {64*act_stride}
    s_mul_i32 s31, s26, {KT//4*2}
    s_add_u32 s30, s30, s31
    s_add_u32 s30, s30, {act_off}
    s_mul_i32 s31, s26, {KT//4*1024}
    s_lshl_b32 s32, s28, 7
    s_add_u32 s31, s31, s32
    s_mul_i32 s32, s26, {NSUB*8192}
    s_waitcnt lgkmcnt(0)
    """)
    srd(a, 8, 4, w_bytes)
    srd(a, 16, 20, WS_TOTAL)
    if res_kind == 'x':
        srd(a, 12, 6, 2097152)
    else:
        srd(a, 12, 6, 1024)
        srd(a, 40, 22, 2097152)

    def dma_piece(p):
        c = p >> 1
        sub = p % NSUB
        for j in range(8):
            a(f"s_add_u32 m0, s32, {sub*8192 + j*1024}")
            if p & 1 == 0:
                a(f"s_add_u32 s33, s30, {8*j*act_stride + c*128}")
                a(f"buffer_load_dwordx4 v{6+(j&1)}, s[16:19], s33 offen lds")
            else:
                a(f"s_add_u32 s33, s31, {(64*c + 8*j)*1024}")
                a(f"buffer_load_dwordx4 v5, s[8:11], s33 offen lds")
    n_init = min(NSUB, npieces)
    for p in range(n_init):
        dma_piece(p)
    VA = 10
    a(f"""
    v_and_b32 v8, 31, v1
    v_lshrrev_b32 v9, 5, v1
    v_bfe_u32 v18, v1, 1, 3
    """)
    for sp in range(4):
        a(f"v_or_b32 v{VA+sp}, {2*sp}, v9")
        a(f"v_xor_b32 v{VA+sp}, v{VA+sp}, v18")
        a(f"v_lshlrev_b32 v{VA+sp}, 4, v{VA+sp}")
        a(f"v_lshl_add_u32 v{VA+sp}, v8, 7, v{VA+sp}")
        a(f"v_add_u32 v{VA+sp}, s32, v{VA+sp}")
    VW = 14
    a(f"""
    v_lshlrev_b32 v16, 3, v9
    v_bfe_u32 v17, v1, 2, 2
    v_add_u32 v16, v16, v17
    v_lshlrev_b32 v16, 7, v16
    v_and_b32 v18, 1, v1
    v_lshlrev_b32 v18, 4, v18
    v_bfe_u32 v19, v1, 1, 1
    v_lshl_or_b32 v18, v19, 3, v18
    v_bfe_u32 v19, v1, 4, 1
    v_lshl_or_b32 v18, v19, 5, v18
    v_lshrrev_b32 v17, 1, v17
    v_lshlrev_b32 v17, 6, v17
    v_xor_b32 v18, v18, v17
    v_add_u32 v{VW}, v16, v18
    v_add_u32 v{VW}, s32, v{VW}
    v_xor_b32 v{VW+1}, 64, v{VW}
    """)
    ACC = 64
    for i in range(64):
        a(f"v_mov_b32 v{ACC+i}, 0")
    FR = [32, 48]

    def frag_loads(c, sp, buf):
        sa = (2 * c) % NSUB
        sw = (2 * c + 1) % NSUB
        f = FR[buf]
        for rbk in range(2):
            a(f"ds_read_b128 v[{f+4*rbk}:{f+4*rbk+3}], v{VA+sp} offset:{sa*8192 + rbk*4096}")
        for cb in range(2):
            for h2 in range(2):
                r = f + 8 + 4 * cb + 2 * h2
                a(f"ds_read_b64_tr_b16 v[{r}:{r+1}], v{VW+cb} offset:{sw*8192 + sp*2048 + h2*512}")

    def mfmas(buf):
        f = FR[buf]
        for rbk in range(2):
            for cb in range(2):
                acc = f"v[{ACC+16*(2*rbk+cb)}:{ACC+16*(2*rbk+cb)+15}]"
                a(f"v_mfma_f32_32x32x16_bf16 {acc}, v[{f+8+4*cb}:{f+11+4*cb}], v[{f+4*rbk}:{f+4*rbk+3}], {acc}")

    issued = n_init
    for c in range(nch):
        need = 2 * c + 2
        a(f"s_waitcnt vmcnt({8*(issued-need)})")
        frag_loads(c, 0, 0)
        for sp in range(4):
            buf = sp & 1
            if sp < 3:
                frag_loads(c, sp + 1, buf ^ 1)
                a("s_waitcnt lgkmcnt(6)")
            else:
                a("s_waitcnt lgkmcnt(0)")
                for p in (2 * c + NSUB, 2 * c + NSUB + 1):
                    if p < npieces and p >= issued:
                        dma_piece(p)
                        issued = p + 1
            mfmas(buf)
    a(f"""
    s_lshr_b32 s34, s26, 1
    s_and_b32 s35, s26, 1
    s_lshl_b32 s36, s27, 1
    s_add_u32 s36, s36, s34
    s_lshl_b32 s36, s36, 15
    s_lshl_b32 s37, s28, 1
    s_add_u32 s37, s37, s35
    s_lshl_b32 s37, s37, 6
    s_add_u32 s36, s36, s37
    v_lshlrev_b32 v2, 10, v8
    v_lshl_or_b32 v2, v9, 4, v2
    """)
    if res_kind == 'x':
        a("buffer_load_dwordx4 v[32:35], v2, s[12:15], s36 offen")
        a("buffer_load_dwordx4 v[36:39], v2, s[12:15], s36 offen offset:32")
    else:
        a(f"s_add_u32 s38, s36, {WS_H}")
        a("buffer_load_dwordx4 v[32:35], v2, s[16:19], s38 offen")
        a("buffer_load_dwordx4 v[36:39], v2, s[16:19], s38 offen offset:32")
        a("v_lshlrev_b32 v3, 4, v9")
        a("buffer_load_dwordx4 v[40:43], v3, s[12:15], s37 offen")
        a("buffer_load_dwordx4 v[44:47], v3, s[12:15], s37 offen offset:32")
    a("s_nop 7")
    a("s_barrier")
    a("v_lshlrev_b32 v4, 4, v1")
    for dd in range(1, 4):
        a(f"s_add_u32 s38, s26, {dd}")
        a("s_and_b32 s38, s38, 3")
        a("s_mul_i32 s39, s38, 12288")
        a(f"s_add_u32 s39, s39, {(dd-1)*4096}")
        a("v_add_u32 v5, s39, v4")
        for d in range(4):
            lab = f"L_{name}_w{dd}_{d}"
            a(f"s_cmp_lg_u32 s38, {d}")
            a(f"s_cbranch_scc1 {lab}")
            for q in range(4):
                r = ACC + 16 * d + 4 * q
                a(f"ds_write_b128 v5, v[{r}:{r+3}] offset:{q*1024}")
            a.label(lab)
    for d in range(4):
        lab = f"L_{name}_m{d}"
        a(f"s_cmp_lg_u32 s26, {d}")
        a(f"s_cbranch_scc1 {lab}")
        for i in range(16):
            a(f"v_mov_b32 v{48+i}, v{ACC+16*d+i}")
        a.label(lab)
    a("s_waitcnt lgkmcnt(0)")
    a("s_barrier")
    a("s_mul_i32 s39, s26, 12288")
    a("v_add_u32 v5, s39, v4")
    for k in range(3):
        for q in range(4):
            r = ACC + 16 * k + 4 * q
            a(f"ds_read_b128 v[{r}:{r+3}], v5 offset:{k*4096 + q*1024}")
    for k in range(3):
        a(f"s_waitcnt lgkmcnt({8-4*k})")
        for i in range(16):
            a(f"v_add_f32 v{48+i}, v{48+i}, v{ACC+16*k+i}")
    a("s_waitcnt vmcnt(0)")
    srcs = [32] if res_kind == 'x' else [32, 40]
    for sb in srcs:
        for i in range(8):
            a(f"v_lshlrev_b32 v6, 16, v{sb+i}")
            a(f"v_and_b32 v7, 0xffff0000, v{sb+i}")
            a(f"v_add_f32 v{48+2*i}, v{48+2*i}, v6")
            a(f"v_add_f32 v{49+2*i}, v{49+2*i}, v7")
    for i in range(8):
        a(f"v_cvt_pk_bf16_f32 v{32+i}, v{48+2*i}, v{49+2*i}")
    if res_kind == 'x':
        a(f"s_add_u32 s38, s36, {WS_H}")
        a("buffer_store_dwordx4 v[32:35], v2, s[16:19], s38 offen")
        a("buffer_store_dwordx4 v[36:39], v2, s[16:19], s38 offen offset:32")
    else:
        a("buffer_store_dwordx4 v[32:35], v2, s[40:43], s36 offen")
        a("buffer_store_dwordx4 v[36:39], v2, s[40:43], s36 offen offset:32")
    a.label(f"L_{name}_end")
    a("s_endpgm")
    return name, a, dict(vgpr=128, sgpr=48, grid=256, block=256, lds=163840)


def k4():
    a = Asm()
    name = "ffn1_kernel"
    header(a, name)
    SLOT = 28672
    ACT = 3 * SLOT
    a(f"""
    s_cmp_ge_u32 s2, 256
    s_cbranch_scc1 L_k4_end
    s_load_dwordx4 s[4:7], s[0:1], {KA_W1}
    s_load_dwordx2 s[20:21], s[0:1], {KA_WS}
    v_and_b32 v1, 63, v0
    v_lshrrev_b32 v2, 6, v0
    s_and_b32 s24, s2, 7
    s_lshr_b32 s25, s2, 3
    v_readfirstlane_b32 s26, v2
    s_lshl_b32 s27, s24, 2
    s_and_b32 s28, s25, 3
    s_add_u32 s27, s27, s28
    s_lshr_b32 s28, s25, 2
    v_lshrrev_b32 v3, 3, v1
    v_and_b32 v4, 7, v1
    v_lshlrev_b32 v5, 4, v4
    v_lshl_add_u32 v5, v3, 10, v5
    s_lshl_b32 s30, s27, 16
    s_lshl_b32 s31, s26, 14
    s_add_u32 s30, s30, s31
    s_add_u32 s30, s30, {WS_H}
    s_waitcnt lgkmcnt(0)
    """)
    srd(a, 8, 4, 1835008)
    srd(a, 12, 6, 3584)
    srd(a, 16, 20, WS_TOTAL)
    XB = 64
    ln_loads(a, 16, 30, 5, XB)
    VD = 24
    a("s_mul_i32 s32, s26, 448")
    a("s_mov_b32 s33, 2341")
    a("s_mov_b32 s34, 3584")
    for u in range(7):
        d = VD + u
        a(f"v_add_u32 v6, s32, v1")
        if u:
            a(f"v_add_u32 v6, {64*u}, v6")
        a(f"v_mul_u32_u24 v7, s33, v6")
        a(f"v_lshrrev_b32 v7, 16, v7")
        a(f"v_mul_u32_u24 v8, 28, v7")
        a(f"v_sub_u32 v8, v6, v8")
        a(f"v_lshrrev_b32 v9, 5, v7")
        a(f"v_mul_u32_u24 v9, 224, v9")
        a(f"v_add_u32 v7, v7, v9")
        a(f"v_mul_u32_u24 v7, s34, v7")
        a(f"v_lshl_add_u32 v{d}, v8, 4, v7")
    a("s_mul_i32 s32, s28, 448")
    a("s_mul_i32 s33, s26, 7168")

    def dma_chunk(c):
        slot = c % 3
        a(f"s_add_u32 s34, s32, {c*32*3584}")
        for u in range(7):
            a(f"s_add_u32 m0, s33, {slot*SLOT + u*1024}")
            a("s_nop 0")
            a(f"buffer_load_dwordx4 v{VD+u}, s[8:11], s34 offen lds")
    for c in range(3):
        dma_chunk(c)
    VWR0, VWR1 = 8, 10
    ln_addr_setup(a, 1, 31, ACT, VWR0, VWR1, 12, 13)
    VA = 16
    a("s_and_b32 s35, s26, 1")
    a("s_lshl_b32 s35, s35, 15")
    a("s_lshr_b32 s36, s26, 1")
    a("s_lshl_b32 s37, s36, 9")
    a("s_add_u32 s35, s35, s37")
    act_frag_addr_setup(a, 1, ACT, 35, VA, 12, 13)
    VW = 32
    a(f"""
    v_lshrrev_b32 v12, 5, v1
    v_lshlrev_b32 v12, 3, v12
    v_bfe_u32 v13, v1, 2, 2
    v_add_u32 v12, v12, v13
    s_lshl_b32 s37, s36, 5
    v_add_u32 v12, s37, v12
    v_mul_u32_u24 v12, 448, v12
    v_and_b32 v14, 1, v1
    v_lshlrev_b32 v14, 4, v14
    v_bfe_u32 v15, v1, 1, 1
    v_lshl_or_b32 v14, v15, 3, v14
    v_bfe_u32 v15, v1, 4, 1
    v_lshl_or_b32 v14, v15, 5, v14
    v_add_u32 v{VW}, v12, v14
    v_add_u32 v{VW+1}, {SLOT}, v{VW}
    v_add_u32 v{VW+2}, {2*SLOT}, v{VW}
    s_mov_b32 s38, 0x3f803f80
    s_waitcnt vmcnt(21)
    """)
    ln_compute(a, XB, 36, 38, VWR0, VWR1)
    ACC = 128
    for i in range(112):
        a(f"v_mov_b32 v{ACC+i}, 0")
    FR = [64, 96]

    def frag_loads(c, sp, buf):
        ks = 2 * c + sp
        f = FR[buf]
        a(f"ds_read_b128 v[{f}:{f+3}], v{VA+(ks&7)} offset:{(ks>>3)*256}")
        for cb in range(7):
            for h2 in range(2):
                r = f + 4 + 4 * cb + 2 * h2
                a(f"ds_read_b64_tr_b16 v[{r}:{r+1}], v{VW+(c%3)} offset:{sp*7168 + h2*1792 + cb*64}")

    def mfmas(buf):
        f = FR[buf]
        for cb in range(7):
            acc = f"v[{ACC+16*cb}:{ACC+16*cb+15}]"
            a(f"v_mfma_f32_32x32x16_bf16 {acc}, v[{f+4+4*cb}:{f+7+4*cb}], v[{f}:{f+3}], {acc}")

    issued = 2
    for c in range(8):
        a(f"s_waitcnt vmcnt({7*(issued-c)}) lgkmcnt(0)")
        a("s_barrier")
        if c >= 1 and c + 2 <= 7:
            dma_chunk(c + 2)
            issued = c + 2
        frag_loads(c, 0, 0)
        frag_loads(c, 1, 1)
        a("s_waitcnt lgkmcnt(15)")
        mfmas(0)
        a("s_waitcnt lgkmcnt(0)")
        mfmas(1)
    a(f"""
    v_lshrrev_b32 v2, 5, v1
    v_lshlrev_b32 v3, 4, v2
    s_lshl_b32 s37, s36, 5
    s_add_u32 s39, s32, s37
    """)
    for cb in range(7):
        a(f"buffer_load_dwordx4 v[{64+4*cb}:{67+4*cb}], v3, s[12:15], s39 offen offset:{cb*64}")
    a("s_nop 7")
    a("s_barrier")
    a(f"""
    v_lshlrev_b32 v4, 4, v1
    s_mul_i32 s40, s26, 14336
    v_add_u32 v5, s40, v4
    s_xor_b32 s41, s26, 2
    s_mul_i32 s41, s41, 14336
    v_add_u32 v6, s41, v4
    s_cmp_eq_u32 s36, 0
    s_cbranch_scc0 L_k4_kh1
    """)
    for cb in range(7):
        for q in range(2):
            r = ACC + 16 * cb + 8 + 4 * q
            a(f"ds_write_b128 v5, v[{r}:{r+3}] offset:{cb*2048 + q*1024}")
    a("s_branch L_k4_j")
    a.label("L_k4_kh1")
    for cb in range(7):
        for q in range(2):
            r = ACC + 16 * cb + 4 * q
            a(f"ds_write_b128 v5, v[{r}:{r+3}] offset:{cb*2048 + q*1024}")
    a("s_nop 1")
    for cb in range(7):
        for i in range(8):
            a(f"v_mov_b32 v{ACC+16*cb+i}, v{ACC+16*cb+8+i}")
    a.label("L_k4_j")
    a("s_waitcnt lgkmcnt(0)")
    a("s_barrier")
    for cb in range(7):
        for q in range(2):
            r = ACC + 16 * cb + 8 + 4 * q
            a(f"ds_read_b128 v[{r}:{r+3}], v6 offset:{cb*2048 + q*1024}")
    a(f"""
    v_and_b32 v7, 31, v1
    v_mul_u32_u24 v7, 3584, v7
    v_add_u32 v7, v7, v3
    s_lshl_b32 s40, s27, 1
    s_and_b32 s41, s26, 1
    s_add_u32 s40, s40, s41
    s_mul_i32 s40, s40, {32*3584}
    s_add_u32 s40, s40, s39
    s_add_u32 s40, s40, {WS_H1}
    """)
    C0 = -2.0 * 0.7978845608028654 * math.log2(math.e)
    C1 = C0 * 0.044715
    a(f"v_mov_b32 v8, {hex(f32bits(C0))}")
    a(f"v_mov_b32 v9, {hex(f32bits(C1))}")
    a("s_waitcnt vmcnt(0)")
    for cb in range(7):
        a(f"s_waitcnt lgkmcnt({12-2*cb})")
        base = ACC + 16 * cb
        for i in range(8):
            a(f"v_add_f32 v{base+i}, v{base+i}, v{base+8+i}")
        for i in range(4):
            b = 64 + 4 * cb + i
            a(f"v_lshlrev_b32 v10, 16, v{b}")
            a(f"v_and_b32 v11, 0xffff0000, v{b}")
            a(f"v_add_f32 v{base+2*i}, v{base+2*i}, v10")
            a(f"v_add_f32 v{base+2*i+1}, v{base+2*i+1}, v11")
        for i in range(8):
            a(f"v_mul_f32 v{base+8+i}, v{base+i}, v{base+i}")
        for i in range(8):
            a(f"v_fma_f32 v{base+8+i}, v{base+8+i}, v9, v8")
        for i in range(8):
            a(f"v_mul_f32 v{base+8+i}, v{base+8+i}, v{base+i}")
        for i in range(8):
            a(f"v_exp_f32 v{base+8+i}, v{base+8+i}")
        for i in range(8):
            a(f"v_add_f32 v{base+8+i}, 1.0, v{base+8+i}")
        for i in range(8):
            a(f"v_rcp_f32 v{base+8+i}, v{base+8+i}")
        for i in range(8):
            a(f"v_mul_f32 v{base+i}, v{base+i}, v{base+8+i}")
        for i in range(4):
            a(f"v_cvt_pk_bf16_f32 v{base+8+i}, v{base+2*i}, v{base+2*i+1}")
        a(f"buffer_store_dwordx4 v[{base+8}:{base+11}], v7, s[16:19], s40 offen offset:{cb*64}")
    a.label("L_k4_end")
    a("s_endpgm")
    return name, a, dict(vgpr=240, sgpr=48, grid=256, block=256, lds=ACT + 65536)


def build():
    ks = [k1(), k2(),
          gemm64("oproj_kernel", 512, True, WS_O, 1024, KA_WO, 524288, 'x'),
          k4(),
          gemm64("ffn2_kernel", 1792, True, WS_H1, 3584, KA_W2, 1835008, 'h')]
    ref = open(f"cdna_kernels/{NAME}.s.ref").read()
    head = []
    for line in ref.split("\n"):
        if line.startswith(";") and "@launch" not in line:
            head.append(line)
        elif not line.startswith(";"):
            break
    out = "\n".join(head) + "\n"
    for n, a, d in ks:
        out += f"; @launch kernel={n} grid=({d['grid']},1,1) block=({d['block']},1,1) lds={d['lds']}\n"
    out += '.amdgcn_target "amdgcn-amd-amdhsa--gfx950"\n.text\n'
    for n, a, d in ks:
        out += a.text()
    out += '.section .rodata,"a"\n'
    for n, a, d in ks:
        acc = (d['vgpr'] + 3) // 4 * 4
        out += f""".p2align 6
.amdhsa_kernel {n}
  .amdhsa_next_free_vgpr {d['vgpr']}
  .amdhsa_next_free_sgpr {d['sgpr']}
  .amdhsa_accum_offset {acc}
  .amdhsa_group_segment_fixed_size 0
  .amdhsa_kernarg_size 88
  .amdhsa_user_sgpr_count 2
  .amdhsa_user_sgpr_kernarg_segment_ptr 1
  .amdhsa_system_sgpr_workgroup_id_x 1
.end_amdhsa_kernel
"""
    return out


if __name__ == "__main__":
    path = sys.argv[1] if len(sys.argv) > 1 else f"cdna_kernels/{NAME}.s"
    open(path, "w").write(build())
    print("wrote", path)
```
